```python
import torch

def _softmax(x, axis=-1):
    return torch.softmax(x, dim=axis)

def _gelu(x):
    return torch.nn.functional.gelu(x, approximate='tanh')

def _silu(x):
    return torch.nn.functional.silu(x)

def _sigmoid(x):
    return torch.sigmoid(x)

def _layernorm(x, axis=-1, eps=1e-05):
    m = x.mean(dim=axis, keepdim=True)
    v = x.var(dim=axis, keepdim=True, unbiased=False)
    return (x - m) / torch.sqrt(v + eps)

def _scatter_add(tgt, idx, src, axis=0):
    return tgt.clone().index_add_(axis, idx, src)

def _segment_sum(src, seg, n):
    out = torch.zeros((n,) + src.shape[1:], dtype=src.dtype)
    return out.index_add_(0, seg, src)

def _pad(x, pw):
    flat = tuple((v for pair in reversed(pw) for v in pair))
    return torch.nn.functional.pad(x, flat)
kernel_name = 'adaLN_cond__mha_block_cached__swiglu_ffn__decode'

def setup_inputs():

    _w = lambda a: (lambda t: t.to(torch.bfloat16) if t.is_floating_point() else t)(torch.as_tensor(a))

    def _A_setup():
        B, Sq, D = (4, 1, 576)
        H, Sk, Dh = (32, 4096, 128)
        return {'x': _w((lambda *s: torch.randn(*s, dtype=torch.bfloat16) * 0.1)(B, Sq, D)), 'k_cache': _w((lambda *s: torch.randn(*s, dtype=torch.bfloat16) * 0.8)(B, H, Sk, Dh)), 'v_cache': _w((lambda *s: torch.randn(*s, dtype=torch.bfloat16) * 1.6)(B, H, Sk, Dh)), 'wq': _w((lambda *s: torch.randn(*s, dtype=torch.bfloat16) * 0.8)(D, H * Dh) * D ** (-0.5)), 'wo': _w((lambda *s: torch.randn(*s, dtype=torch.bfloat16) * 1.6)(H * Dh, D) * (H * Dh) ** (-0.5))}
    _A_in = _A_setup()

    def _B_setup():
        B, S, D, F = (4, 1, 576, 4608)
        return {'x': _w((lambda *s: torch.randn(*s, dtype=torch.bfloat16) * 0.1)(B, S, D)), 'w_gate': _w((lambda *s: torch.randn(*s, dtype=torch.bfloat16) * 0.2)(D, F)), 'w_up': _w((lambda *s: torch.randn(*s, dtype=torch.bfloat16) * 0.2)(D, F)), 'w_down': _w((lambda *s: torch.randn(*s, dtype=torch.bfloat16) * 0.2)(F, D))}
    _B_in = _B_setup()
    return {'A_x': _A_in['x'], 'A_k_cache': _A_in['k_cache'], 'A_v_cache': _A_in['v_cache'], 'A_wq': _A_in['wq'], 'A_wo': _A_in['wo'], 'B_x': _B_in['x'], 'B_w_gate': _B_in['w_gate'], 'B_w_up': _B_in['w_up'], 'B_w_down': _B_in['w_down'], 'c': _w((lambda *s: torch.randn(*s, dtype=torch.bfloat16) * 0.4)(4, 576) * 8.0), 'w_mod': _w((lambda *s: torch.randn(*s, dtype=torch.bfloat16) * 0.4)(576, 6 * 576) * 576 ** (-0.5) * 8.0)}

def reference(A_x, A_k_cache, A_v_cache, A_wq, A_wo, B_x, B_w_gate, B_w_up, B_w_down, c, w_mod):

    def _A_ref(x, k_cache, v_cache, wq, wo):
        B, Sq, D = x.shape
        H, Dh = (32, 128)
        q = (lambda x, *d: x.permute(*d))((x @ wq).reshape(B, Sq, H, Dh), 0, 2, 1, 3)
        scores = torch.einsum('bhqd,bhkd->bhqk', q, k_cache) * Dh ** (-0.5)
        p = _softmax(scores, axis=-1)
        o = torch.einsum('bhqk,bhkd->bhqd', p, v_cache)
        return (lambda x, *d: x.permute(*d))(o, 0, 2, 1, 3).reshape(B, Sq, H * Dh) @ wo

    def _B_ref(x, w_gate, w_up, w_down):
        g = _silu(x @ w_gate)
        u = x @ w_up
        return g * u @ w_down
    x = A_x
    mod = (_silu(c) @ w_mod).reshape(c.shape[0], 6, 1, -1)
    sa, ca, ga, sb, cb, gb = (mod[:, 0].clone(), mod[:, 1].clone(), mod[:, 2].clone(), mod[:, 3].clone(), mod[:, 4].clone(), mod[:, 5].clone())
    h = _layernorm(x, axis=-1) * (1 + ca) + sa
    x = x + ga * _A_ref(h, A_k_cache, A_v_cache, A_wq, A_wo)
    h = _layernorm(x, axis=-1) * (1 + cb) + sb
    x = x + gb * _B_ref(h, B_w_gate, B_w_up, B_w_down)
    return x
```

```python
L = []
def e(s=""): L.append(s)
WS_MOD=0x0; WS_Q=0x10000; WS_PART=0x20000; WS_ACC1=0x80000; WS_ACT=0x90000; WS_ACC2=0xA0000
WS_BYTES=536870912
LOG2E="0x3fb8aa3b"
kernels=[]
def begin(name):
    e(f".globl {name}"); e(".p2align 8"); e(f".type {name},@function"); e(f"{name}:")
def end(name, vg, sg=100):
    e("s_endpgm")
    kernels.append((name, vg, sg))
def srd(d, base, nbytes):
    e(f"s_mov_b32 s{d}, s{base}"); e(f"s_and_b32 s{d+1}, s{base+1}, 0xffff")
    e(f"s_mov_b32 s{d+2}, {nbytes}"); e(f"s_mov_b32 s{d+3}, 0x00020000")
def bf16r(d, s):
    e(f"v_cvt_pk_bf16_f32 v{d}, v{s}, v{s}"); e(f"v_and_b32 v{d}, 0xffff0000, v{d}")
def wsum(v, sdst):
    for n in ("row_shr:1","row_shr:2","row_shr:4","row_shr:8"):
        e("s_nop 1"); e(f"v_add_f32_dpp v{v}, v{v}, v{v} {n} row_mask:0xf bank_mask:0xf bound_ctrl:0")
    e("s_nop 1"); e(f"v_add_f32_dpp v{v}, v{v}, v{v} row_bcast:15 row_mask:0xa bank_mask:0xf")
    e("s_nop 1"); e(f"v_add_f32_dpp v{v}, v{v}, v{v} row_bcast:31 row_mask:0xc bank_mask:0xf")
    e("s_nop 1"); e(f"v_readlane_b32 s{sdst}, v{v}, 63"); e("s_nop 3")
def exit_guard(n, name):
    e(f"s_cmp_ge_u32 s2, {n}"); e(f"s_cbranch_scc1 {name}_done")

def gemv(COLS, nrows, ld, wsrd, s_colbyte, A0, RED, acc=32, dat=64, av=140):
    lpr = COLS//8
    rpi = 64//lpr
    step = rpi*4
    n = nrows//step
    sh = {4:2,8:3}[lpr]
    e("v_and_b32 v1, 63, v0"); e("v_lshrrev_b32 v2, 6, v0")
    e(f"v_lshrrev_b32 v3, {sh}, v1"); e(f"v_and_b32 v1, {lpr-1}, v1")
    e(f"v_mad_u32_u24 v3, v2, {rpi}, v3")
    e(f"s_mov_b32 s90, {ld}"); e("v_mul_lo_u32 v4, v3, s90"); e("v_lshl_add_u32 v4, v1, 4, v4")
    e(f"s_mov_b32 s91, s{s_colbyte}")
    for t in range(n):
        e(f"buffer_load_dwordx4 v[{dat+4*t}:{dat+4*t+3}], v4, s[{wsrd}:{wsrd+3}], s91 offen")
        if t<n-1: e(f"s_add_u32 s91, s91, {step*ld}")
    e(f"v_lshlrev_b32 v5, 4, v3")
    for t in range(n):
        e(f"ds_read_b128 v[{av+4*t}:{av+4*t+3}], v5 offset:{A0+t*step*16}")
    for i in range(32): e(f"v_mov_b32 v{acc+i}, 0")
    e("s_waitcnt lgkmcnt(0)")
    for t in range(n):
        e(f"s_waitcnt vmcnt({n-1-t})")
        for j in range(4):
            e(f"v_lshlrev_b32 v6, 16, v{dat+4*t+j}"); e(f"v_and_b32 v7, 0xffff0000, v{dat+4*t+j}")
            for b in range(4):
                e(f"v_fmac_f32 v{acc+b*8+2*j}, v{av+4*t+b}, v6"); e(f"v_fmac_f32 v{acc+b*8+2*j+1}, v{av+4*t+b}, v7")
    e(f"v_mul_u32_u24 v5, {COLS*16}, v3"); e("v_lshl_add_u32 v5, v1, 5, v5")
    for b in range(4):
        e(f"ds_write_b128 v5, v[{acc+b*8}:{acc+b*8+3}] offset:{RED+b*COLS*4}")
        e(f"ds_write_b128 v5, v[{acc+b*8+4}:{acc+b*8+7}] offset:{RED+b*COLS*4+16}")
    e("s_waitcnt lgkmcnt(0)"); e("s_barrier")
    e("v_lshlrev_b32 v5, 2, v0"); e("v_mov_b32 v10, 0")
    for r0 in range(0, step, 16):
        for r in range(16): e(f"ds_read_b32 v{dat+r}, v5 offset:{RED+(r0+r)*COLS*16}")
        e("s_waitcnt lgkmcnt(0)")
        for r in range(16): e(f"v_add_f32 v10, v10, v{dat+r}")

def ln_prologue(xsrd, wsrd, coff, soff, with_attn):
    e("v_and_b32 v1, 63, v0"); e("v_lshrrev_b32 v2, 6, v0")
    e("v_mul_u32_u24 v3, 576, v2"); e("v_add_u32 v3, v3, v1")
    e("v_lshlrev_b32 v4, 1, v3")
    for j in range(9): e(f"buffer_load_ushort v{64+j}, v4, s[{xsrd}:{xsrd+3}], 0 offen offset:{128*j}")
    e("v_mul_u32_u24 v5, 3456, v2"); e("v_add_u32 v5, v5, v1"); e("v_lshlrev_b32 v5, 2, v5")
    e(f"s_mov_b32 s94, {coff*4}"); e(f"s_mov_b32 s95, {soff*4}"); e("s_mov_b32 s96, 4608")
    for j in range(9):
        e(f"buffer_load_dword v{80+j}, v5, s[{wsrd}:{wsrd+3}], s94 offen offset:{256*j}")
        e(f"buffer_load_dword v{96+j}, v5, s[{wsrd}:{wsrd+3}], s95 offen offset:{256*j}")
    if with_attn:
        e("v_lshlrev_b32 v6, 2, v3"); e(f"s_mov_b32 s92, {WS_ACC1}")
        for j in range(9):
            e(f"buffer_load_dword v{112+j}, v6, s[{wsrd}:{wsrd+3}], s92 offen offset:{256*j} sc0 sc1")
            e(f"buffer_load_dword v{128+j}, v5, s[{wsrd}:{wsrd+3}], s96 offen offset:{256*j}")
    e("s_waitcnt vmcnt(0)")
    for j in range(9):
        e(f"v_lshlrev_b32 v{64+j}, 16, v{64+j}")
        if with_attn:
            bf16r(112+j,112+j); e(f"v_mul_f32 v{112+j}, v{112+j}, v{128+j}"); bf16r(112+j,112+j)
            e(f"v_add_f32 v{64+j}, v{64+j}, v{112+j}"); bf16r(64+j,64+j)
    e("v_mov_b32 v7, 0")
    for j in range(9): e(f"v_add_f32 v7, v7, v{64+j}")
    wsum(7, 93)
    e("v_mov_b32 v7, 0x3ae38e39"); e("v_mul_f32 v8, s93, v7")
    e("v_mov_b32 v9, 0")
    for j in range(9): e(f"v_sub_f32 v6, v{64+j}, v8"); e("v_fmac_f32 v9, v6, v6")
    wsum(9, 93)
    e("v_mul_f32 v9, s93, v7"); bf16r(9,9); e("v_add_f32 v9, 0x3727c5ac, v9"); bf16r(9,9)
    e("v_sqrt_f32 v9, v9"); e("s_nop 0"); bf16r(9,9); e("v_rcp_f32 v11, v9"); bf16r(8,8)
    e("v_lshlrev_b32 v4, 4, v1"); e("v_lshl_add_u32 v4, v2, 2, v4")
    for j in range(9):
        x=64+j
        e(f"v_sub_f32 v{x}, v{x}, v8"); bf16r(x,x)
        e(f"v_mul_f32 v6, v{x}, v11"); e(f"v_fma_f32 v7, -v6, v9, v{x}"); e("v_fmac_f32 v6, v7, v11"); bf16r(6,6)
        e(f"v_add_f32 v7, 1.0, v{80+j}"); bf16r(7,7); e("v_mul_f32 v6, v6, v7"); bf16r(6,6)
        e(f"v_add_f32 v6, v6, v{96+j}"); bf16r(6,6)
        e(f"ds_write_b32 v4, v6 offset:{1024*j}")
    e("s_waitcnt lgkmcnt(0)"); e("s_barrier")

hdr_launch=[]
n="k0_mod_kernel"; begin(n); exit_guard(108,n)
e("s_load_dwordx2 s[4:5], s[0:1], 72"); e("s_load_dwordx2 s[6:7], s[0:1], 80"); e("s_load_dwordx2 s[8:9], s[0:1], 104")
e("s_waitcnt lgkmcnt(0)")
srd(12,4,4608); srd(16,6,576*3456*2); srd(20,8,WS_BYTES)
e("v_and_b32 v1, 63, v0"); e("v_lshrrev_b32 v2, 6, v0"); e("v_mul_u32_u24 v3, 576, v2"); e("v_add_u32 v3, v3, v1"); e("v_lshlrev_b32 v4, 1, v3")
for j in range(9): e(f"buffer_load_ushort v{64+j}, v4, s[12:15], 0 offen offset:{128*j}")
e("v_lshlrev_b32 v4, 4, v1"); e("v_lshl_add_u32 v4, v2, 2, v4"); e("s_waitcnt vmcnt(0)")
for j in range(9):
    x=64+j
    e(f"v_lshlrev_b32 v{x}, 16, v{x}"); e(f"v_mul_f32 v6, 0xbfb8aa3b, v{x}"); e("v_exp_f32 v6, v6"); e("s_nop 0")
    e("v_add_f32 v6, 1.0, v6"); e("v_rcp_f32 v6, v6"); e("s_nop 0"); e(f"v_mul_f32 v6, v6, v{x}"); bf16r(6,6)
    e(f"ds_write_b32 v4, v6 offset:{1024*j}")
e("s_waitcnt lgkmcnt(0)"); e("s_barrier")
e("s_lshl_b32 s24, s2, 6")
gemv(32,576,6912,16,24,0,16384)
bf16r(10,10)
e("v_lshrrev_b32 v2, 5, v0"); e("v_and_b32 v1, 31, v0"); e("v_mul_u32_u24 v2, 3456, v2"); e("v_add_u32 v2, v2, v1")
e("s_lshl_b32 s25, s2, 5"); e("v_add_u32 v2, s25, v2"); e("v_lshlrev_b32 v2, 2, v2")
e("v_cmp_gt_u32 vcc, 128, v0"); e("s_and_saveexec_b64 s[26:27], vcc")
e("buffer_store_dword v10, v2, s[20:23], 0 offen")
e("s_mov_b64 exec, s[26:27]")
e("s_cmp_ge_u32 s2, 9"); e(f"s_cbranch_scc1 {n}_done")
e("v_lshlrev_b32 v2, 2, v0"); e("v_mov_b32 v3, 0"); e("s_lshl_b32 s25, s2, 10"); e(f"s_add_u32 s26, s25, {WS_ACC1}"); e(f"s_add_u32 s27, s25, {WS_ACC2}")
e("buffer_store_dword v3, v2, s[20:23], s26 offen"); e("buffer_store_dword v3, v2, s[20:23], s27 offen")
e(f"{n}_done:"); end(n,200); hdr_launch.append((n,108,256,49152))
n="k1_q_kernel"; begin(n); exit_guard(128,n)
e("s_load_dwordx2 s[4:5], s[0:1], 0"); e("s_load_dwordx2 s[6:7], s[0:1], 24"); e("s_load_dwordx2 s[8:9], s[0:1], 104"); e("s_waitcnt lgkmcnt(0)")
srd(12,4,4608); srd(16,6,576*4096*2); srd(20,8,WS_BYTES)
ln_prologue(12,20,576,0,False)
e("s_lshl_b32 s24, s2, 6")
gemv(32,576,8192,16,24,0,16384)
e("v_cvt_pk_bf16_f32 v10, v10, v10")
e("v_lshrrev_b32 v2, 5, v0"); e("v_and_b32 v1, 31, v0"); e("v_lshlrev_b32 v2, 12, v2"); e("v_add_u32 v2, v2, v1")
e("s_lshl_b32 s25, s2, 5"); e("v_add_u32 v2, s25, v2"); e("v_lshlrev_b32 v2, 1, v2"); e(f"s_mov_b32 s25, {WS_Q}")
e("v_cmp_gt_u32 vcc, 128, v0"); e("s_and_saveexec_b64 s[26:27], vcc")
e("buffer_store_short v10, v2, s[20:23], s25 offen")
e(f"{n}_done:"); end(n,200); hdr_launch.append((n,128,256,49152))
n="k2_attn_kernel"; begin(n); exit_guard(256,n)
NB=4
e("s_load_dwordx2 s[4:5], s[0:1], 8"); e("s_load_dwordx2 s[6:7], s[0:1], 16"); e("s_load_dwordx2 s[8:9], s[0:1], 104"); e("s_waitcnt lgkmcnt(0)")
srd(12,4,134217728); srd(16,6,134217728); srd(20,8,WS_BYTES)
e("v_and_b32 v1, 63, v0"); e("v_lshrrev_b32 v2, 6, v0")
e("v_and_b32 v3, 15, v1"); e("v_lshrrev_b32 v4, 4, v1")
e("v_lshlrev_b32 v5, 8, v3"); e("v_lshl_add_u32 v5, v4, 4, v5")
e("v_lshlrev_b32 v6, 10, v4"); e("v_lshl_add_u32 v6, v3, 4, v6")
e("s_lshl_b32 s24, s2, 19")
e("v_readfirstlane_b32 s25, v2"); e("s_lshl_b32 s25, s25, 12"); e("s_add_u32 s24, s24, s25")
e("s_lshr_b32 s26, s2, 1"); e("s_lshl_b32 s26, s26, 8"); e(f"s_add_u32 s26, s26, {WS_Q}")
e("v_lshlrev_b32 v7, 4, v4")
for c in range(4): e(f"buffer_load_dwordx4 v[{16+4*c}:{19+4*c}], v7, s[20:23], s26 offen offset:{64*c}")
def issue(st, it):
    base=64+32*(st%NB)
    e(f"s_add_u32 s27, s24, {it*32768}")
    for c in range(4): e(f"buffer_load_dwordx4 v[{base+4*c}:{base+4*c+3}], v5, s[12:15], s27 offen offset:{64*c} nt")
    for r in range(4): e(f"buffer_load_dwordx4 v[{base+16+4*r}:{base+19+4*r}], v6, s[16:19], s27 offen offset:{256*r} nt")
for st in range(NB): issue(st, st)
e("v_mov_b32 v8, 0xff800000"); e("v_mov_b32 v9, 0")
for j in range(8): e(f"v_mov_b32 v{32+j}, 0")
e("s_mov_b32 s28, 0x3db504f3"); e(f"s_mov_b32 s29, {LOG2E}")
for it in range(16):
    base=64+32*(it%NB); rem=min(NB-1,15-it)
    e(f"s_waitcnt vmcnt({4+8*rem})")
    for c in range(4):
        e(f"v_mfma_f32_16x16x32_bf16 v[40:43], v[{base+4*c}:{base+4*c+3}], v[{16+4*c}:{19+4*c}], {'0' if c==0 else 'v[40:43]'}")
    e("s_nop 7"); e("s_nop 1")
    for r in range(4):
        bf16r(40+r,40+r); e(f"v_mul_f32 v{40+r}, s28, v{40+r}"); bf16r(40+r,40+r)
    e("v_max3_f32 v44, v40, v41, v42"); e("v_max3_f32 v44, v44, v43, v8")
    e("v_sub_f32 v45, v8, v44"); e("v_mul_f32 v45, s29, v45"); e("v_exp_f32 v45, v45"); e("v_mov_b32 v8, v44")
    for r in range(4):
        e(f"v_sub_f32 v{40+r}, v{40+r}, v44"); e(f"v_mul_f32 v{40+r}, s29, v{40+r}"); e(f"v_exp_f32 v{40+r}, v{40+r}")
    e("v_mul_f32 v9, v9, v45")
    for j in range(8): e(f"v_mul_f32 v{32+j}, v{32+j}, v45")
    for r in range(4): e(f"v_add_f32 v9, v9, v{40+r}")
    e(f"s_waitcnt vmcnt({8*rem})")
    for r in range(4):
        for j in range(4):
            d=base+16+4*r+j
            e(f"v_lshlrev_b32 v46, 16, v{d}"); e(f"v_and_b32 v47, 0xffff0000, v{d}")
            e(f"v_fmac_f32 v{32+2*j}, v{40+r}, v46"); e(f"v_fmac_f32 v{33+2*j}, v{40+r}, v47")
    if it+NB<16: issue(it+NB, it+NB)
e("v_lshl_add_u32 v10, v2, 2, v4"); e("v_lshlrev_b32 v11, 9, v10"); e("v_lshl_add_u32 v11, v3, 5, v11")
e("ds_write_b128 v11, v[32:35]"); e("ds_write_b128 v11, v[36:39] offset:16")
e("v_lshlrev_b32 v11, 2, v10"); e("ds_write_b32 v11, v8 offset:16384"); e("ds_write_b32 v11, v9 offset:16512")
e("s_waitcnt lgkmcnt(0)"); e("s_barrier")
e("v_cmp_gt_u32 vcc, 128, v0"); e("s_and_saveexec_b64 s[30:31], vcc"); e(f"s_cbranch_execz {n}_done")
e("v_mov_b32 v1, 0")
for i in range(0,32,4):
    e(f"ds_read_b128 v[{64+i}:{67+i}], v1 offset:{16384+4*i}"); e(f"ds_read_b128 v[{96+i}:{99+i}], v1 offset:{16512+4*i}")
e("v_lshlrev_b32 v2, 2, v0")
for i in range(32): e(f"ds_read_b32 v{128+i}, v2 offset:{512*i}")
e("s_waitcnt lgkmcnt(0)")
e("v_max_f32 v3, v64, v65")
for i in range(2,32,2): e(f"v_max3_f32 v3, v3, v{64+i}, v{65+i}")
e("v_mov_b32 v4, 0"); e("v_mov_b32 v5, 0")
for i in range(32):
    e(f"v_sub_f32 v6, v{64+i}, v3"); e("v_mul_f32 v6, s29, v6"); e("v_exp_f32 v6, v6"); e("s_nop 0")
    e(f"v_fmac_f32 v4, v6, v{96+i}"); e(f"v_fmac_f32 v5, v6, v{128+i}")
e("s_lshl_b32 s26, s2, 10"); e(f"s_add_u32 s26, s26, {WS_PART}")
e("buffer_store_dword v5, v2, s[20:23], s26 offen")
e("v_cmp_eq_u32 vcc, 0, v0"); e("s_and_saveexec_b64 s[32:33], vcc")
e("buffer_store_dword v3, v1, s[20:23], s26 offen offset:512"); e("buffer_store_dword v4, v1, s[20:23], s26 offen offset:516")
e(f"{n}_done:"); end(n,200); hdr_launch.append((n,256,512,20480))
n="k3_wo_kernel"; begin(n); exit_guard(288,n)
e("s_load_dwordx2 s[6:7], s[0:1], 32"); e("s_load_dwordx2 s[8:9], s[0:1], 104"); e("s_waitcnt lgkmcnt(0)")
srd(16,6,4096*576*2); srd(20,8,WS_BYTES)
e("s_lshr_b32 s24, s2, 5"); e("s_and_b32 s25, s2, 31")
e("v_and_b32 v1, 127, v0"); e("v_lshrrev_b32 v2, 7, v0")
e("v_lshlrev_b32 v3, 17, v2"); e("v_lshl_add_u32 v4, v1, 2, v3")
e("s_lshl_b32 s26, s25, 11"); e(f"s_add_u32 s26, s26, {WS_PART}")
for k in range(2):
    for s in range(2):
        o=k*65536+s*1024
        e(f"buffer_load_dword v{64+(k*2+s)}, v4, s[20:23], s26 offen offset:{s*1024}" if k==0 else f"buffer_load_dword v{64+(k*2+s)}, v5, s[20:23], s26 offen offset:{s*1024}")
        e(f"buffer_load_dwordx2 v[{72+2*(k*2+s)}:{73+2*(k*2+s)}], v{3 if k==0 else 6}, s[20:23], s26 offen offset:{s*1024+512}")
    if k==0: e("v_add_u32 v5, 0x10000, v4"); e("v_add_u32 v6, 0x10000, v3")
e("s_waitcnt vmcnt(0)"); e(f"s_mov_b32 s29, {LOG2E}")
e("v_lshlrev_b32 v7, 4, v1"); e("v_lshl_add_u32 v7, v2, 3, v7")
for k in range(2):
    m0,l0,m1,l1=72+4*k,73+4*k,74+4*k,75+4*k
    e(f"v_max_f32 v8, v{m0}, v{m1}")
    e(f"v_sub_f32 v9, v{m0}, v8"); e("v_mul_f32 v9, s29, v9"); e("v_exp_f32 v9, v9")
    e(f"v_sub_f32 v11, v{m1}, v8"); e("v_mul_f32 v11, s29, v11"); e("v_exp_f32 v11, v11"); e("s_nop 0")
    e(f"v_mul_f32 v12, v9, v{l0}"); e(f"v_fmac_f32 v12, v11, v{l1}"); e("v_rcp_f32 v12, v12")
    e(f"v_mul_f32 v13, v9, v{64+2*k}"); e(f"v_fmac_f32 v13, v11, v{65+2*k}"); e("v_mul_f32 v13, v13, v12"); bf16r(13,13)
    e(f"ds_write_b32 v7, v13 offset:{4*k}")
e("s_waitcnt lgkmcnt(0)"); e("s_barrier")
e("s_mul_i32 s27, s25, 147456"); e("s_lshl_b32 s24, s24, 7"); e("s_add_u32 s27, s27, s24")
gemv(64,128,1152,16,27,0,16384)
e("v_lshrrev_b32 v2, 6, v0"); e("v_and_b32 v1, 63, v0"); e("v_mul_u32_u24 v2, 2304, v2"); e("v_lshl_add_u32 v2, v1, 2, v2")
e("s_lshl_b32 s24, s24, 1"); e(f"s_add_u32 s24, s24, {WS_ACC1}")
e("buffer_atomic_add_f32 v10, v2, s[20:23], s24 offen")
e(f"{n}_done:"); end(n,200); hdr_launch.append((n,288,256,49152))
n="k4_ffn1_kernel"; begin(n); exit_guard(144,n)
e("s_load_dwordx2 s[4:5], s[0:1], 0"); e("s_load_dwordx2 s[6:7], s[0:1], 48"); e("s_load_dwordx2 s[8:9], s[0:1], 104"); e("s_load_dwordx2 s[10:11], s[0:1], 56"); e("s_waitcnt lgkmcnt(0)")
srd(12,4,4608); srd(16,6,576*4608*2); srd(20,8,WS_BYTES); srd(40,10,576*4608*2)
ln_prologue(12,20,2304,1728,True)
e("s_lshl_b32 s24, s2, 6")
gemv(32,576,9216,16,24,0,16384)
e("v_mov_b32 v200, v10"); e("s_barrier")
gemv(32,576,9216,40,24,0,16384)
bf16r(200,200); bf16r(10,10)
e("v_mul_f32 v6, 0xbfb8aa3b, v200"); e("v_exp_f32 v6, v6"); e("s_nop 0"); e("v_add_f32 v6, 1.0, v6"); e("v_rcp_f32 v6, v6"); e("s_nop 0")
e("v_mul_f32 v6, v6, v200"); bf16r(6,6); e("v_mul_f32 v10, v6, v10"); e("v_cvt_pk_bf16_f32 v10, v10, v10")
e("v_lshrrev_b32 v2, 5, v0"); e("v_and_b32 v1, 31, v0"); e("v_mul_u32_u24 v2, 4608, v2"); e("v_add_u32 v2, v2, v1")
e("s_lshl_b32 s25, s2, 5"); e("v_add_u32 v2, s25, v2"); e("v_lshlrev_b32 v2, 1, v2"); e(f"s_mov_b32 s25, {WS_ACT}")
e("v_cmp_gt_u32 vcc, 128, v0"); e("s_and_saveexec_b64 s[26:27], vcc")
e("buffer_store_short v10, v2, s[20:23], s25 offen")
e(f"{n}_done:"); end(n,208); hdr_launch.append((n,144,256,49152))
n="k5_down_kernel"; begin(n); exit_guard(324,n)
e("s_load_dwordx2 s[6:7], s[0:1], 64"); e("s_load_dwordx2 s[8:9], s[0:1], 104"); e("s_waitcnt lgkmcnt(0)")
srd(16,6,4608*576*2); srd(20,8,WS_BYTES)
e("s_mul_hi_u32 s24, s2, 0x1c71c71d"); e("s_lshr_b32 s24, s24, 0")
e("s_mul_i32 s25, s24, 9"); e("s_sub_u32 s25, s2, s25")
e("v_and_b32 v1, 127, v0"); e("v_lshrrev_b32 v2, 7, v0")
e("v_mul_u32_u24 v3, 18432, v2"); e("v_lshl_add_u32 v3, v1, 1, v3"); e("s_lshl_b32 s26, s24, 8"); e(f"s_add_u32 s26, s26, {WS_ACT}")
e("buffer_load_ushort v64, v3, s[20:23], s26 offen"); e("v_add_u32 v4, 0x2400, v3"); e("buffer_load_ushort v65, v4, s[20:23], s26 offen")
e("v_lshlrev_b32 v7, 4, v1"); e("v_lshl_add_u32 v7, v2, 3, v7"); e("s_waitcnt vmcnt(0)")
e("v_lshlrev_b32 v64, 16, v64"); e("v_lshlrev_b32 v65, 16, v65"); e("ds_write_b64 v7, v[64:65]")
e("s_waitcnt lgkmcnt(0)"); e("s_barrier")
e("s_mul_i32 s27, s24, 147456"); e("s_lshl_b32 s25, s25, 7"); e("s_add_u32 s27, s27, s25")
gemv(64,128,1152,16,27,0,16384)
e("v_lshrrev_b32 v2, 6, v0"); e("v_and_b32 v1, 63, v0"); e("v_mul_u32_u24 v2, 2304, v2"); e("v_lshl_add_u32 v2, v1, 2, v2")
e("s_lshl_b32 s25, s25, 1"); e(f"s_add_u32 s25, s25, {WS_ACC2}")
e("buffer_atomic_add_f32 v10, v2, s[20:23], s25 offen")
e(f"{n}_done:"); end(n,200); hdr_launch.append((n,324,256,49152))
n="k6_fin_kernel"; begin(n); exit_guard(9,n)
e("s_load_dwordx2 s[4:5], s[0:1], 0"); e("s_load_dwordx2 s[6:7], s[0:1], 88"); e("s_load_dwordx2 s[8:9], s[0:1], 104"); e("s_waitcnt lgkmcnt(0)")
srd(12,4,4608); srd(16,6,4608); srd(20,8,WS_BYTES)
e("s_lshl_b32 s24, s2, 8"); e("v_add_u32 v1, s24, v0")
e("s_mov_b32 s25, 0x71c72"); e("v_mul_u32_u24 v2, s25, v1"); e("v_lshrrev_b32 v2, 28, v2")
e("v_mul_u32_u24 v3, 2880, v2"); e("v_add_u32 v3, v3, v1"); e("v_lshlrev_b32 v3, 2, v3")
e("v_lshlrev_b32 v4, 2, v1"); e("v_lshlrev_b32 v5, 1, v1"); e(f"s_mov_b32 s26, {WS_ACC1}"); e(f"s_mov_b32 s27, {WS_ACC2}")
e("buffer_load_ushort v10, v5, s[12:15], 0 offen"); e("buffer_load_dword v11, v4, s[20:23], s26 offen sc0 sc1"); e("buffer_load_dword v12, v4, s[20:23], s27 offen sc0 sc1")
e("v_add_u32 v3, 0x1200, v3"); e("buffer_load_dword v13, v3, s[20:23], 0 offen"); e("v_add_u32 v3, 0x1b00, v3"); e("buffer_load_dword v14, v3, s[20:23], 0 offen")
e("s_waitcnt vmcnt(0)"); e("v_lshlrev_b32 v10, 16, v10")
bf16r(11,11); e("v_mul_f32 v11, v11, v13"); bf16r(11,11); e("v_add_f32 v10, v10, v11"); bf16r(10,10)
bf16r(12,12); e("v_mul_f32 v12, v12, v14"); bf16r(12,12); e("v_add_f32 v10, v10, v12"); e("v_cvt_pk_bf16_f32 v10, v10, v10")
e("buffer_store_short v10, v5, s[16:19], 0 offen")
e(f"{n}_done:"); end(n,32); hdr_launch.append((n,9,256,0))

out=["; generated by gen/gen.py"]
for (nm,g,b,l) in hdr_launch: out.append(f"; @launch kernel={nm} grid=({g},1,1) block=({b},1,1) lds={l}")
out+= ['.amdgcn_target "amdgcn-amd-amdhsa--gfx950"', ".text"]+L
out.append('.section .rodata,"a"')
for (nm,vg,sg) in kernels:
    out+= [".p2align 6", f".amdhsa_kernel {nm}", f"  .amdhsa_next_free_vgpr {vg}", f"  .amdhsa_next_free_sgpr {sg}",
           f"  .amdhsa_accum_offset {(vg+3)//4*4}", "  .amdhsa_group_segment_fixed_size 0", "  .amdhsa_kernarg_size 112",
           "  .amdhsa_user_sgpr_count 2", "  .amdhsa_user_sgpr_kernarg_segment_ptr 1", "  .amdhsa_system_sgpr_workgroup_id_x 1", ".end_amdhsa_kernel"]
open("adaLN_cond__mha_block_cached__swiglu_ffn__decode.s","w").write("\n".join(out)+"\n")
```

```python
L = []
def e(s=""): L.append(s)
WS_MOD=0x0; WS_Q=0x10000; WS_PART=0x20000; WS_ACC1=0x80000; WS_ACT=0x90000; WS_ACC2=0xA0000
WS_BYTES=536870912
LOG2E="0x3fb8aa3b"
kernels=[]
def begin(name):
    e(f".globl {name}"); e(".p2align 8"); e(f".type {name},@function"); e(f"{name}:")
def end(name, vg, sg=100):
    e("s_endpgm")
    kernels.append((name, vg, sg))
def srd(d, base, nbytes):
    e(f"s_mov_b32 s{d}, s{base}"); e(f"s_and_b32 s{d+1}, s{base+1}, 0xffff")
    e(f"s_mov_b32 s{d+2}, {nbytes}"); e(f"s_mov_b32 s{d+3}, 0x00020000")
def bf16r(d, s):
    e(f"v_cvt_pk_bf16_f32 v{d}, v{s}, v{s}"); e(f"v_and_b32 v{d}, 0xffff0000, v{d}")
def wsum(v, sdst):
    for n in ("row_shr:1","row_shr:2","row_shr:4","row_shr:8"):
        e("s_nop 1"); e(f"v_add_f32_dpp v{v}, v{v}, v{v} {n} row_mask:0xf bank_mask:0xf bound_ctrl:0")
    e("s_nop 1"); e(f"v_add_f32_dpp v{v}, v{v}, v{v} row_bcast:15 row_mask:0xa bank_mask:0xf")
    e("s_nop 1"); e(f"v_add_f32_dpp v{v}, v{v}, v{v} row_bcast:31 row_mask:0xc bank_mask:0xf")
    e("s_nop 1"); e(f"v_readlane_b32 s{sdst}, v{v}, 63"); e("s_nop 3")
def exit_guard(n, name):
    e(f"s_cmp_ge_u32 s2, {n}"); e(f"s_cbranch_scc1 {name}_done")

def gemv(COLS, nrows, ld, wsrd, s_colbyte, A0, RED, acc=32, dat=160, av=64, ph=3, extra=0):
    lpr = COLS//8
    rpi = 64//lpr
    step = rpi*4
    n = nrows//step
    sh = {4:2,8:3}[lpr]
    e("v_and_b32 v1, 63, v0"); e("v_lshrrev_b32 v2, 6, v0")
    e(f"v_lshrrev_b32 v3, {sh}, v1"); e(f"v_and_b32 v1, {lpr-1}, v1")
    e(f"v_mad_u32_u24 v3, v2, {rpi}, v3")
    e(f"s_mov_b32 s90, {ld}"); e("v_mul_lo_u32 v4, v3, s90"); e("v_lshl_add_u32 v4, v1, 4, v4")
    e(f"s_mov_b32 s91, s{s_colbyte}")
    for t in range(n if ph&1 else 0):
        e(f"buffer_load_dwordx4 v[{dat+4*t}:{dat+4*t+3}], v4, s[{wsrd}:{wsrd+3}], s91 offen")
        if t<n-1: e(f"s_add_u32 s91, s91, {step*ld}")
    if not ph&2: return
    e(f"v_lshlrev_b32 v5, 4, v3")
    for t in range(n):
        e(f"ds_read_b128 v[{av+4*t}:{av+4*t+3}], v5 offset:{A0+t*step*16}")
    for i in range(32): e(f"v_mov_b32 v{acc+i}, 0")
    e("s_waitcnt lgkmcnt(0)")
    for t in range(n):
        e(f"s_waitcnt vmcnt({n-1-t+extra})")
        for j in range(4):
            e(f"v_lshlrev_b32 v6, 16, v{dat+4*t+j}"); e(f"v_and_b32 v7, 0xffff0000, v{dat+4*t+j}")
            for b in range(4):
                e(f"v_fmac_f32 v{acc+b*8+2*j}, v{av+4*t+b}, v6"); e(f"v_fmac_f32 v{acc+b*8+2*j+1}, v{av+4*t+b}, v7")
    e(f"v_mul_u32_u24 v5, {COLS*16}, v3"); e("v_lshl_add_u32 v5, v1, 5, v5")
    for b in range(4):
        e(f"ds_write_b128 v5, v[{acc+b*8}:{acc+b*8+3}] offset:{RED+b*COLS*4}")
        e(f"ds_write_b128 v5, v[{acc+b*8+4}:{acc+b*8+7}] offset:{RED+b*COLS*4+16}")
    e("s_waitcnt lgkmcnt(0)"); e("s_barrier")
    e("v_lshlrev_b32 v5, 2, v0"); e("v_mov_b32 v10, 0")
    for r0 in range(0, step, 16):
        for r in range(16): e(f"ds_read_b32 v{av+r}, v5 offset:{RED+(r0+r)*COLS*16}")
        e("s_waitcnt lgkmcnt(0)")
        for r in range(16): e(f"v_add_f32 v10, v10, v{av+r}")

def ln_prologue(xsrd, wsrd, coff, soff, with_attn):
    e("v_and_b32 v1, 63, v0"); e("v_lshrrev_b32 v2, 6, v0")
    e("v_mul_u32_u24 v3, 576, v2"); e("v_add_u32 v3, v3, v1")
    e("v_lshlrev_b32 v4, 1, v3")
    for j in range(9): e(f"buffer_load_ushort v{64+j}, v4, s[{xsrd}:{xsrd+3}], 0 offen offset:{128*j}")
    e("v_mul_u32_u24 v5, 3456, v2"); e("v_add_u32 v5, v5, v1"); e("v_lshlrev_b32 v5, 2, v5")
    e(f"s_mov_b32 s94, {coff*4}"); e(f"s_mov_b32 s95, {soff*4}"); e("s_mov_b32 s96, 4608")
    for j in range(9):
        e(f"buffer_load_dword v{80+j}, v5, s[{wsrd}:{wsrd+3}], s94 offen offset:{256*j}")
        e(f"buffer_load_dword v{96+j}, v5, s[{wsrd}:{wsrd+3}], s95 offen offset:{256*j}")
    if with_attn:
        e("v_lshlrev_b32 v6, 2, v3"); e(f"s_mov_b32 s92, {WS_ACC1}")
        for j in range(9):
            e(f"buffer_load_dword v{112+j}, v6, s[{wsrd}:{wsrd+3}], s92 offen offset:{256*j} sc0 sc1")
            e(f"buffer_load_dword v{128+j}, v5, s[{wsrd}:{wsrd+3}], s96 offen offset:{256*j}")
    e("s_waitcnt vmcnt(0)")
    for j in range(9):
        e(f"v_lshlrev_b32 v{64+j}, 16, v{64+j}")
        if with_attn:
            bf16r(112+j,112+j); e(f"v_mul_f32 v{112+j}, v{112+j}, v{128+j}"); bf16r(112+j,112+j)
            e(f"v_add_f32 v{64+j}, v{64+j}, v{112+j}"); bf16r(64+j,64+j)
    e("v_mov_b32 v7, 0")
    for j in range(9): e(f"v_add_f32 v7, v7, v{64+j}")
    wsum(7, 93)
    e("v_mov_b32 v7, 0x3ae38e39"); e("v_mul_f32 v8, s93, v7")
    e("v_mov_b32 v9, 0")
    for j in range(9): e(f"v_sub_f32 v6, v{64+j}, v8"); e("v_fmac_f32 v9, v6, v6")
    wsum(9, 93)
    e("v_mul_f32 v9, s93, v7"); bf16r(9,9); e("v_add_f32 v9, 0x3727c5ac, v9"); bf16r(9,9)
    e("v_sqrt_f32 v9, v9"); e("s_nop 0"); bf16r(9,9); e("v_rcp_f32 v11, v9"); bf16r(8,8)
    e("v_lshlrev_b32 v4, 4, v1"); e("v_lshl_add_u32 v4, v2, 2, v4")
    for j in range(9):
        x=64+j
        e(f"v_sub_f32 v{x}, v{x}, v8"); bf16r(x,x)
        e(f"v_mul_f32 v6, v{x}, v11"); e(f"v_fma_f32 v7, -v6, v9, v{x}"); e("v_fmac_f32 v6, v7, v11"); bf16r(6,6)
        e(f"v_add_f32 v7, 1.0, v{80+j}"); bf16r(7,7); e("v_mul_f32 v6, v6, v7"); bf16r(6,6)
        e(f"v_add_f32 v6, v6, v{96+j}"); bf16r(6,6)
        e(f"ds_write_b32 v4, v6 offset:{1024*j}")
    e("s_waitcnt lgkmcnt(0)"); e("s_barrier")

hdr_launch=[]
n="k0_mod_kernel"; begin(n); exit_guard(108,n)
e("s_load_dwordx2 s[4:5], s[0:1], 72"); e("s_load_dwordx2 s[6:7], s[0:1], 80"); e("s_load_dwordx2 s[8:9], s[0:1], 104")
e("s_waitcnt lgkmcnt(0)")
srd(12,4,4608); srd(16,6,576*3456*2); srd(20,8,WS_BYTES)
e("s_lshl_b32 s24, s2, 6"); gemv(32,576,6912,16,24,0,16384,ph=1)
e("v_and_b32 v1, 63, v0"); e("v_lshrrev_b32 v2, 6, v0"); e("v_mul_u32_u24 v3, 576, v2"); e("v_add_u32 v3, v3, v1"); e("v_lshlrev_b32 v4, 1, v3")
for j in range(9): e(f"buffer_load_ushort v{64+j}, v4, s[12:15], 0 offen offset:{128*j}")
e("v_lshlrev_b32 v4, 4, v1"); e("v_lshl_add_u32 v4, v2, 2, v4"); e("s_waitcnt vmcnt(0)")
for j in range(9):
    x=64+j
    e(f"v_lshlrev_b32 v{x}, 16, v{x}"); e(f"v_mul_f32 v6, 0xbfb8aa3b, v{x}"); e("v_exp_f32 v6, v6"); e("s_nop 0")
    e("v_add_f32 v6, 1.0, v6"); e("v_rcp_f32 v6, v6"); e("s_nop 0"); e(f"v_mul_f32 v6, v6, v{x}"); bf16r(6,6)
    e(f"ds_write_b32 v4, v6 offset:{1024*j}")
e("s_waitcnt lgkmcnt(0)"); e("s_barrier")
e("s_lshl_b32 s24, s2, 6")
gemv(32,576,6912,16,24,0,16384,ph=2)
bf16r(10,10)
e("v_lshrrev_b32 v2, 5, v0"); e("v_and_b32 v1, 31, v0"); e("v_mul_u32_u24 v2, 3456, v2"); e("v_add_u32 v2, v2, v1")
e("s_lshl_b32 s25, s2, 5"); e("v_add_u32 v2, s25, v2"); e("v_lshlrev_b32 v2, 2, v2")
e("v_cmp_gt_u32 vcc, 128, v0"); e("s_and_saveexec_b64 s[26:27], vcc")
e("buffer_store_dword v10, v2, s[20:23], 0 offen")
e("s_mov_b64 exec, s[26:27]")
e("s_cmp_ge_u32 s2, 9"); e(f"s_cbranch_scc1 {n}_done")
e("v_lshlrev_b32 v2, 2, v0"); e("v_mov_b32 v3, 0"); e("s_lshl_b32 s25, s2, 10"); e(f"s_add_u32 s26, s25, {WS_ACC1}"); e(f"s_add_u32 s27, s25, {WS_ACC2}")
e("buffer_store_dword v3, v2, s[20:23], s26 offen"); e("buffer_store_dword v3, v2, s[20:23], s27 offen")
e(f"{n}_done:"); end(n,248); hdr_launch.append((n,108,256,49152))
n="k1_q_kernel"; begin(n); exit_guard(128,n)
e("s_load_dwordx2 s[4:5], s[0:1], 0"); e("s_load_dwordx2 s[6:7], s[0:1], 24"); e("s_load_dwordx2 s[8:9], s[0:1], 104"); e("s_waitcnt lgkmcnt(0)")
srd(12,4,4608); srd(16,6,576*4096*2); srd(20,8,WS_BYTES)
e("s_lshl_b32 s24, s2, 6"); gemv(32,576,8192,16,24,0,16384,ph=1)
ln_prologue(12,20,576,0,False)
e("s_lshl_b32 s24, s2, 6")
gemv(32,576,8192,16,24,0,16384,ph=2)
e("v_cvt_pk_bf16_f32 v10, v10, v10")
e("v_lshrrev_b32 v2, 5, v0"); e("v_and_b32 v1, 31, v0"); e("v_lshlrev_b32 v2, 12, v2"); e("v_add_u32 v2, v2, v1")
e("s_lshl_b32 s25, s2, 5"); e("v_add_u32 v2, s25, v2"); e("v_lshlrev_b32 v2, 1, v2"); e(f"s_mov_b32 s25, {WS_Q}")
e("v_cmp_gt_u32 vcc, 128, v0"); e("s_and_saveexec_b64 s[26:27], vcc")
e("buffer_store_short v10, v2, s[20:23], s25 offen")
e(f"{n}_done:"); end(n,248); hdr_launch.append((n,128,256,49152))
n="k2_attn_kernel"; begin(n); exit_guard(256,n)
NB=4
e("s_load_dwordx2 s[4:5], s[0:1], 8"); e("s_load_dwordx2 s[6:7], s[0:1], 16"); e("s_load_dwordx2 s[8:9], s[0:1], 104"); e("s_waitcnt lgkmcnt(0)")
srd(12,4,134217728); srd(16,6,134217728); srd(20,8,WS_BYTES)
e("v_and_b32 v1, 63, v0"); e("v_lshrrev_b32 v2, 6, v0")
e("v_and_b32 v3, 15, v1"); e("v_lshrrev_b32 v4, 4, v1")
e("v_lshlrev_b32 v5, 8, v3"); e("v_lshl_add_u32 v5, v4, 4, v5")
e("v_lshlrev_b32 v6, 10, v4"); e("v_lshl_add_u32 v6, v3, 4, v6")
e("s_lshl_b32 s24, s2, 19")
e("v_readfirstlane_b32 s25, v2"); e("s_lshl_b32 s25, s25, 12"); e("s_add_u32 s24, s24, s25")
e("s_lshr_b32 s26, s2, 1"); e("s_lshl_b32 s26, s26, 8"); e(f"s_add_u32 s26, s26, {WS_Q}")
e("v_lshlrev_b32 v7, 4, v4")
for c in range(4): e(f"buffer_load_dwordx4 v[{16+4*c}:{19+4*c}], v7, s[20:23], s26 offen offset:{64*c}")
def issue(st, it):
    base=64+32*(st%NB)
    e(f"s_add_u32 s27, s24, {it*32768}")
    for c in range(4): e(f"buffer_load_dwordx4 v[{base+4*c}:{base+4*c+3}], v5, s[12:15], s27 offen offset:{64*c} nt")
    for r in range(4): e(f"buffer_load_dwordx4 v[{base+16+4*r}:{base+19+4*r}], v6, s[16:19], s27 offen offset:{256*r} nt")
for st in range(NB): issue(st, st)
e("v_mov_b32 v8, 0xff800000"); e("v_mov_b32 v9, 0")
for j in range(8): e(f"v_mov_b32 v{32+j}, 0")
e("s_mov_b32 s28, 0x3db504f3"); e(f"s_mov_b32 s29, {LOG2E}")
for it in range(16):
    base=64+32*(it%NB); rem=min(NB-1,15-it)
    e(f"s_waitcnt vmcnt({4+8*rem})")
    for c in range(4):
        e(f"v_mfma_f32_16x16x32_bf16 v[40:43], v[{base+4*c}:{base+4*c+3}], v[{16+4*c}:{19+4*c}], {'0' if c==0 else 'v[40:43]'}")
    e("s_nop 7"); e("s_nop 1")
    for r in range(4):
        bf16r(40+r,40+r); e(f"v_mul_f32 v{40+r}, s28, v{40+r}"); bf16r(40+r,40+r)
    e("v_max3_f32 v44, v40, v41, v42"); e("v_max3_f32 v44, v44, v43, v8")
    e("v_sub_f32 v45, v8, v44"); e("v_mul_f32 v45, s29, v45"); e("v_exp_f32 v45, v45"); e("v_mov_b32 v8, v44")
    for r in range(4):
        e(f"v_sub_f32 v{40+r}, v{40+r}, v44"); e(f"v_mul_f32 v{40+r}, s29, v{40+r}"); e(f"v_exp_f32 v{40+r}, v{40+r}")
    e("v_mul_f32 v9, v9, v45")
    for j in range(8): e(f"v_mul_f32 v{32+j}, v{32+j}, v45")
    for r in range(4): e(f"v_add_f32 v9, v9, v{40+r}")
    e(f"s_waitcnt vmcnt({8*rem})")
    for r in range(4):
        for j in range(4):
            d=base+16+4*r+j
            e(f"v_lshlrev_b32 v46, 16, v{d}"); e(f"v_and_b32 v47, 0xffff0000, v{d}")
            e(f"v_fmac_f32 v{32+2*j}, v{40+r}, v46"); e(f"v_fmac_f32 v{33+2*j}, v{40+r}, v47")
    if it+NB<16: issue(it+NB, it+NB)
e("v_lshl_add_u32 v10, v2, 2, v4"); e("v_lshlrev_b32 v11, 9, v10"); e("v_lshl_add_u32 v11, v3, 5, v11")
e("ds_write_b128 v11, v[32:35]"); e("ds_write_b128 v11, v[36:39] offset:16")
e("v_lshlrev_b32 v11, 2, v10"); e("ds_write_b32 v11, v8 offset:16384"); e("ds_write_b32 v11, v9 offset:16512")
e("s_waitcnt lgkmcnt(0)"); e("s_barrier")
e("v_cmp_gt_u32 vcc, 128, v0"); e("s_and_saveexec_b64 s[30:31], vcc"); e(f"s_cbranch_execz {n}_done")
e("v_mov_b32 v1, 0")
for i in range(0,32,4):
    e(f"ds_read_b128 v[{64+i}:{67+i}], v1 offset:{16384+4*i}"); e(f"ds_read_b128 v[{96+i}:{99+i}], v1 offset:{16512+4*i}")
e("v_lshlrev_b32 v2, 2, v0")
for i in range(32): e(f"ds_read_b32 v{128+i}, v2 offset:{512*i}")
e("s_waitcnt lgkmcnt(0)")
e("v_max_f32 v3, v64, v65")
for i in range(2,32,2): e(f"v_max3_f32 v3, v3, v{64+i}, v{65+i}")
e("v_mov_b32 v4, 0"); e("v_mov_b32 v5, 0")
for i in range(32):
    e(f"v_sub_f32 v6, v{64+i}, v3"); e("v_mul_f32 v6, s29, v6"); e("v_exp_f32 v6, v6"); e("s_nop 0")
    e(f"v_fmac_f32 v4, v6, v{96+i}"); e(f"v_fmac_f32 v5, v6, v{128+i}")
e("s_lshl_b32 s26, s2, 10"); e(f"s_add_u32 s26, s26, {WS_PART}")
e("buffer_store_dword v5, v2, s[20:23], s26 offen")
e("v_cmp_eq_u32 vcc, 0, v0"); e("s_and_saveexec_b64 s[32:33], vcc")
e("buffer_store_dword v3, v1, s[20:23], s26 offen offset:512"); e("buffer_store_dword v4, v1, s[20:23], s26 offen offset:516")
e(f"{n}_done:"); end(n,248); hdr_launch.append((n,256,512,20480))
n="k3_wo_kernel"; begin(n); exit_guard(288,n)
e("s_load_dwordx2 s[6:7], s[0:1], 32"); e("s_load_dwordx2 s[8:9], s[0:1], 104"); e("s_waitcnt lgkmcnt(0)")
srd(16,6,4096*576*2); srd(20,8,WS_BYTES)
e("s_lshr_b32 s24, s2, 5"); e("s_and_b32 s25, s2, 31"); e("s_mul_i32 s27, s25, 147456"); e("s_lshl_b32 s24, s24, 7"); e("s_add_u32 s27, s27, s24"); gemv(64,128,1152,16,27,0,16384,ph=1)
e("v_and_b32 v1, 127, v0"); e("v_lshrrev_b32 v2, 7, v0")
e("v_lshlrev_b32 v3, 17, v2"); e("v_lshl_add_u32 v4, v1, 2, v3")
e("s_lshl_b32 s26, s25, 11"); e(f"s_add_u32 s26, s26, {WS_PART}")
for k in range(2):
    for s in range(2):
        o=k*65536+s*1024
        e(f"buffer_load_dword v{64+(k*2+s)}, v4, s[20:23], s26 offen offset:{s*1024}" if k==0 else f"buffer_load_dword v{64+(k*2+s)}, v5, s[20:23], s26 offen offset:{s*1024}")
        e(f"buffer_load_dwordx2 v[{72+2*(k*2+s)}:{73+2*(k*2+s)}], v{3 if k==0 else 6}, s[20:23], s26 offen offset:{s*1024+512}")
    if k==0: e("v_add_u32 v5, 0x10000, v4"); e("v_add_u32 v6, 0x10000, v3")
e("s_waitcnt vmcnt(0)"); e(f"s_mov_b32 s29, {LOG2E}")
e("v_lshlrev_b32 v7, 4, v1"); e("v_lshl_add_u32 v7, v2, 3, v7")
for k in range(2):
    m0,l0,m1,l1=72+4*k,73+4*k,74+4*k,75+4*k
    e(f"v_max_f32 v8, v{m0}, v{m1}")
    e(f"v_sub_f32 v9, v{m0}, v8"); e("v_mul_f32 v9, s29, v9"); e("v_exp_f32 v9, v9")
    e(f"v_sub_f32 v11, v{m1}, v8"); e("v_mul_f32 v11, s29, v11"); e("v_exp_f32 v11, v11"); e("s_nop 0")
    e(f"v_mul_f32 v12, v9, v{l0}"); e(f"v_fmac_f32 v12, v11, v{l1}"); e("v_rcp_f32 v12, v12")
    e(f"v_mul_f32 v13, v9, v{64+2*k}"); e(f"v_fmac_f32 v13, v11, v{65+2*k}"); e("v_mul_f32 v13, v13, v12"); bf16r(13,13)
    e(f"ds_write_b32 v7, v13 offset:{4*k}")
e("s_waitcnt lgkmcnt(0)"); e("s_barrier")
gemv(64,128,1152,16,27,0,16384,ph=2)
e("v_lshrrev_b32 v2, 6, v0"); e("v_and_b32 v1, 63, v0"); e("v_mul_u32_u24 v2, 2304, v2"); e("v_lshl_add_u32 v2, v1, 2, v2")
e("s_lshl_b32 s24, s24, 1"); e(f"s_add_u32 s24, s24, {WS_ACC1}")
e("buffer_atomic_add_f32 v10, v2, s[20:23], s24 offen")
e(f"{n}_done:"); end(n,248); hdr_launch.append((n,288,256,49152))
n="k4_ffn1_kernel"; begin(n); exit_guard(144,n)
e("s_load_dwordx2 s[4:5], s[0:1], 0"); e("s_load_dwordx2 s[6:7], s[0:1], 48"); e("s_load_dwordx2 s[8:9], s[0:1], 104"); e("s_load_dwordx2 s[10:11], s[0:1], 56"); e("s_waitcnt lgkmcnt(0)")
srd(12,4,4608); srd(16,6,576*4608*2); srd(20,8,WS_BYTES); srd(40,10,576*4608*2)
e("s_lshl_b32 s24, s2, 6"); gemv(32,576,9216,16,24,0,16384,ph=1); gemv(32,576,9216,40,24,0,16384,ph=1,dat=196)
ln_prologue(12,20,2304,1728,True)
e("s_lshl_b32 s24, s2, 6")
gemv(32,576,9216,16,24,0,16384,ph=2,extra=9)
e("v_mov_b32 v240, v10"); e("s_barrier")
gemv(32,576,9216,40,24,0,16384,ph=2,dat=196)
bf16r(200,200); bf16r(10,10)
e("v_mul_f32 v6, 0xbfb8aa3b, v240"); e("v_exp_f32 v6, v6"); e("s_nop 0"); e("v_add_f32 v6, 1.0, v6"); e("v_rcp_f32 v6, v6"); e("s_nop 0")
e("v_mul_f32 v6, v6, v240"); bf16r(6,6); e("v_mul_f32 v10, v6, v10"); e("v_cvt_pk_bf16_f32 v10, v10, v10")
e("v_lshrrev_b32 v2, 5, v0"); e("v_and_b32 v1, 31, v0"); e("v_mul_u32_u24 v2, 4608, v2"); e("v_add_u32 v2, v2, v1")
e("s_lshl_b32 s25, s2, 5"); e("v_add_u32 v2, s25, v2"); e("v_lshlrev_b32 v2, 1, v2"); e(f"s_mov_b32 s25, {WS_ACT}")
e("v_cmp_gt_u32 vcc, 128, v0"); e("s_and_saveexec_b64 s[26:27], vcc")
e("buffer_store_short v10, v2, s[20:23], s25 offen")
e(f"{n}_done:"); end(n,248); hdr_launch.append((n,144,256,49152))
n="k5_down_kernel"; begin(n); exit_guard(324,n)
e("s_load_dwordx2 s[6:7], s[0:1], 64"); e("s_load_dwordx2 s[8:9], s[0:1], 104"); e("s_waitcnt lgkmcnt(0)")
srd(16,6,4608*576*2); srd(20,8,WS_BYTES)
e("s_mul_hi_u32 s24, s2, 0x1c71c71d"); e("s_lshr_b32 s24, s24, 0")
e("s_mul_i32 s25, s24, 9"); e("s_sub_u32 s25, s2, s25"); e("s_mul_i32 s27, s24, 147456"); e("s_lshl_b32 s25, s25, 7"); e("s_add_u32 s27, s27, s25"); gemv(64,128,1152,16,27,0,16384,ph=1)
e("v_and_b32 v1, 127, v0"); e("v_lshrrev_b32 v2, 7, v0")
e("v_mul_u32_u24 v3, 18432, v2"); e("v_lshl_add_u32 v3, v1, 1, v3"); e("s_lshl_b32 s26, s24, 8"); e(f"s_add_u32 s26, s26, {WS_ACT}")
e("buffer_load_ushort v64, v3, s[20:23], s26 offen"); e("v_add_u32 v4, 0x2400, v3"); e("buffer_load_ushort v65, v4, s[20:23], s26 offen")
e("v_lshlrev_b32 v7, 4, v1"); e("v_lshl_add_u32 v7, v2, 3, v7"); e("s_waitcnt vmcnt(0)")
e("v_lshlrev_b32 v64, 16, v64"); e("v_lshlrev_b32 v65, 16, v65"); e("ds_write_b64 v7, v[64:65]")
e("s_waitcnt lgkmcnt(0)"); e("s_barrier")
gemv(64,128,1152,16,27,0,16384,ph=2)
e("v_lshrrev_b32 v2, 6, v0"); e("v_and_b32 v1, 63, v0"); e("v_mul_u32_u24 v2, 2304, v2"); e("v_lshl_add_u32 v2, v1, 2, v2")
e("s_lshl_b32 s25, s25, 1"); e(f"s_add_u32 s25, s25, {WS_ACC2}")
e("buffer_atomic_add_f32 v10, v2, s[20:23], s25 offen")
e(f"{n}_done:"); end(n,248); hdr_launch.append((n,324,256,49152))
n="k6_fin_kernel"; begin(n); exit_guard(9,n)
e("s_load_dwordx2 s[4:5], s[0:1], 0"); e("s_load_dwordx2 s[6:7], s[0:1], 88"); e("s_load_dwordx2 s[8:9], s[0:1], 104"); e("s_waitcnt lgkmcnt(0)")
srd(12,4,4608); srd(16,6,4608); srd(20,8,WS_BYTES)
e("s_lshl_b32 s24, s2, 8"); e("v_add_u32 v1, s24, v0")
e("s_mov_b32 s25, 0x71c72"); e("v_mul_u32_u24 v2, s25, v1"); e("v_lshrrev_b32 v2, 28, v2")
e("v_mul_u32_u24 v3, 2880, v2"); e("v_add_u32 v3, v3, v1"); e("v_lshlrev_b32 v3, 2, v3")
e("v_lshlrev_b32 v4, 2, v1"); e("v_lshlrev_b32 v5, 1, v1"); e(f"s_mov_b32 s26, {WS_ACC1}"); e(f"s_mov_b32 s27, {WS_ACC2}")
e("buffer_load_ushort v10, v5, s[12:15], 0 offen"); e("buffer_load_dword v11, v4, s[20:23], s26 offen sc0 sc1"); e("buffer_load_dword v12, v4, s[20:23], s27 offen sc0 sc1")
e("v_add_u32 v3, 0x1200, v3"); e("buffer_load_dword v13, v3, s[20:23], 0 offen"); e("v_add_u32 v3, 0x1b00, v3"); e("buffer_load_dword v14, v3, s[20:23], 0 offen")
e("s_waitcnt vmcnt(0)"); e("v_lshlrev_b32 v10, 16, v10")
bf16r(11,11); e("v_mul_f32 v11, v11, v13"); bf16r(11,11); e("v_add_f32 v10, v10, v11"); bf16r(10,10)
bf16r(12,12); e("v_mul_f32 v12, v12, v14"); bf16r(12,12); e("v_add_f32 v10, v10, v12"); e("v_cvt_pk_bf16_f32 v10, v10, v10")
e("buffer_store_short v10, v5, s[16:19], 0 offen")
e(f"{n}_done:"); end(n,32); hdr_launch.append((n,9,256,0))

out=["; generated by gen/gen.py"]
for (nm,g,b,l) in hdr_launch: out.append(f"; @launch kernel={nm} grid=({g},1,1) block=({b},1,1) lds={l}")
out+= ['.amdgcn_target "amdgcn-amd-amdhsa--gfx950"', ".text"]+L
out.append('.section .rodata,"a"')
for (nm,vg,sg) in kernels:
    out+= [".p2align 6", f".amdhsa_kernel {nm}", f"  .amdhsa_next_free_vgpr {vg}", f"  .amdhsa_next_free_sgpr {sg}",
           f"  .amdhsa_accum_offset {(vg+3)//4*4}", "  .amdhsa_group_segment_fixed_size 0", "  .amdhsa_kernarg_size 112",
           "  .amdhsa_user_sgpr_count 2", "  .amdhsa_user_sgpr_kernarg_segment_ptr 1", "  .amdhsa_system_sgpr_workgroup_id_x 1", ".end_amdhsa_kernel"]
open("adaLN_cond__mha_block_cached__swiglu_ffn__decode.s","w").write("\n".join(out)+"\n")
```
